```python
import torch

def _softmax(x, axis=-1):
    return torch.softmax(x, dim=axis)
def _gelu(x):
    return torch.nn.functional.gelu(x, approximate="tanh")
def _silu(x):
    return torch.nn.functional.silu(x)
def _sigmoid(x):
    return torch.sigmoid(x)
def _layernorm(x, axis=-1, eps=1e-5):
    m = x.mean(dim=axis, keepdim=True)
    v = x.var(dim=axis, keepdim=True, unbiased=False)
    return (x - m) / torch.sqrt(v + eps)
def _scatter_add(tgt, idx, src, axis=0):
    return tgt.clone().index_add_(axis, idx, src)
def _segment_sum(src, seg, n):
    out = torch.zeros((n,) + src.shape[1:], dtype=src.dtype)
    return out.index_add_(0, seg, src)
def _pad(x, pw):
    flat = tuple(v for pair in reversed(pw) for v in pair)
    return torch.nn.functional.pad(x, flat)

kernel_name = 'concat_heads__grouped_kv_mqa__spectral_fnet__prompt'

def setup_inputs():

    _w = (lambda a: (lambda t: t.to(torch.bfloat16) if t.is_floating_point() else t)(torch.as_tensor(a)))
    def _A_setup():
        B, S, D, H = 1, 2048, 448, 16
        Dh = D // H
        return {
            "x": _w((lambda *s: torch.randn(*s, dtype=torch.bfloat16) * 0.05)(B, S, D)),
            "wq": _w((lambda *s: torch.randn(*s, dtype=torch.bfloat16) * 3.2)(D, H * Dh)),
            "wk": _w((lambda *s: torch.randn(*s, dtype=torch.bfloat16) * 3.2)(D, Dh)),
            "wv": _w((lambda *s: torch.randn(*s, dtype=torch.bfloat16) * 0.4)(D, Dh)),
            "wo": _w((lambda *s: torch.randn(*s, dtype=torch.bfloat16) * 0.4)(H * Dh, D)),
        }
    _A_in = _A_setup()

    def _B_setup():
        B, S, D = 1, 2048, 448
        ns = torch.arange(S)[:, None] * torch.arange(S)[None, :]
        nd = torch.arange(D)[:, None] * torch.arange(D)[None, :]
        Ws_re = torch.cos(-2.0 * torch.pi * ns / S).to(float)
        Ws_im = torch.sin(-2.0 * torch.pi * ns / S).to(float)
        Wd_re = torch.cos(-2.0 * torch.pi * nd / D).to(float)
        Wd_im = torch.sin(-2.0 * torch.pi * nd / D).to(float)
        return {
            "x": _w((lambda *s: torch.randn(*s, dtype=torch.bfloat16) * 0.05)(B, S, D)),
            "dft_seq_re": _w(Ws_re),
            "dft_seq_im": _w(Ws_im),
            "dft_hid_re": _w(Wd_re),
            "dft_hid_im": _w(Wd_im),
        }
    _B_in = _B_setup()

    return {
        "A_x": _A_in["x"],
        "A_wq": _A_in["wq"],
        "A_wk": _A_in["wk"],
        "A_wv": _A_in["wv"],
        "A_wo": _A_in["wo"],
        "B_x": _B_in["x"],
        "B_dft_seq_re": _B_in["dft_seq_re"],
        "B_dft_seq_im": _B_in["dft_seq_im"],
        "B_dft_hid_re": _B_in["dft_hid_re"],
        "B_dft_hid_im": _B_in["dft_hid_im"],
    }

def reference(A_x, A_wq, A_wk, A_wv, A_wo, B_x, B_dft_seq_re, B_dft_seq_im, B_dft_hid_re, B_dft_hid_im):
    def _A_ref(x, wq, wk, wv, wo):
        B, S, D = x.shape
        H = 16
        Dh = D // H
        q = (lambda x, *d: x.permute(*d))((x @ wq).reshape(B, S, H, Dh), 0, 2, 1, 3)
        k = x @ wk
        v = x @ wv
        scores = torch.einsum("bhqd,bkd->bhqk", q, k) * (Dh ** -0.5)
        p = _softmax(scores, axis=-1)
        o = torch.einsum("bhqk,bkd->bhqd", p, v)
        return (lambda x, *d: x.permute(*d))(o, 0, 2, 1, 3).reshape(B, S, H * Dh) @ wo

    def _B_ref(x, dft_seq_re, dft_seq_im, dft_hid_re, dft_hid_im):
        a = torch.einsum("bsd,ed->bse", x, dft_hid_re)
        b = torch.einsum("bsd,ed->bse", x, dft_hid_im)
        y = torch.einsum("ts,bse->bte", dft_seq_re, a) - torch.einsum("ts,bse->bte", dft_seq_im, b)
        return y

    a = _A_ref(A_x, A_wq, A_wk, A_wv, A_wo)
    b = _B_ref(B_x, B_dft_seq_re, B_dft_seq_im, B_dft_hid_re, B_dft_hid_im)
    return torch.concatenate([a, b], axis=-1)
```

```python
import re

_reg = re.compile(r"(?<![\w.])(-?\|?)([vas])(?:(\d+)|\[(\d+):(\d+)\])(?![\w])")
TRANS = ("v_exp_", "v_log_", "v_rcp_", "v_rsq_", "v_sqrt_", "v_sin_", "v_cos_")


def regs_of(op):
    out = set()
    op = op.strip()
    for m in _reg.finditer(op):
        k = m.group(2)
        if m.group(3) is not None:
            out.add((k, int(m.group(3))))
        else:
            for i in range(int(m.group(4)), int(m.group(5)) + 1):
                out.add((k, i))
    if re.search(r"\bvcc\b", op): out |= {("s", "vcc")}
    if re.search(r"\bm0\b", op): out.add(("s", "m0"))
    if re.search(r"\bexec(_lo|_hi)?\b", op): out.add(("s", "exec"))
    return out


class Ins:
    def __init__(self, text):
        self.text = text
        t = text.split(";")[0].strip()
        parts = t.split(None, 1)
        self.op = op = parts[0]
        rest = parts[1] if len(parts) > 1 else ""
        ops, depth, cur = [], 0, ""
        for ch in rest:
            if ch == "[": depth += 1
            if ch == "]": depth -= 1
            if ch == "," and depth == 0:
                ops.append(cur); cur = ""
            else:
                cur += ch
        if cur.strip(): ops.append(cur)
        ops = [re.sub(r"\b(op_sel|op_sel_hi|neg_lo|neg_hi|quad_perm):\[[^\]]*\]", "", o) for o in ops]
        self.ops = ops
        self.mfma = op.startswith("v_mfma") or op.startswith("v_smfmac")
        self.valu = op.startswith("v_") and not self.mfma
        self.trans = op.startswith(TRANS)
        self.vmem = op.startswith(("buffer_", "global_"))
        self.ds = op.startswith("ds_")
        self.smem = op.startswith(("s_load", "s_memtime", "s_memrealtime"))
        self.salu = op.startswith("s_") and not self.smem
        self.dma = self.vmem and (re.search(r"\blds\b", t) is not None or "_lds_" in op)
        self.store = (self.vmem and "store" in op) or (self.ds and op.startswith("ds_write"))
        self.w, self.r, self.c = set(), set(), set()
        R = [regs_of(o) for o in ops]
        if self.store or self.dma or op.startswith(("s_cmp", "s_waitcnt", "s_nop", "s_barrier", "s_cbranch", "s_branch",
                                                   "s_endpgm", "s_setprio", "s_sleep", "s_bitcmp")):
            for x in R: self.r |= x
            if self.dma: self.r.add(("s", "m0"))
        elif op.startswith("v_smfmac"):
            self.w = R[0]; self.c = R[0]; self.r = R[1] | R[2] | R[3]
        elif op.startswith("v_mfma"):
            self.w = R[0]; self.r = R[1] | R[2]; self.c = R[3]
        elif op.startswith("v_permlane") and "swap" in op:
            self.w = R[0] | R[1]; self.r = R[0] | R[1]
        elif re.match(r"v_(add|sub|subrev|addc|subb)_co_", op):
            self.w = R[0] | R[1]
            for x in R[2:]: self.r |= x
        else:
            if R: self.w = set(R[0])
            for x in R[1:]: self.r |= x
            if op.startswith(("v_fmac", "v_pk_fmac")): self.r |= R[0]
            if "saveexec" in op: self.w.add(("s", "exec"))
        self.passes = 0
        if self.mfma:
            self.passes = 8 if "32x32" in op else 4
        self.wide_store = self.vmem and self.store and re.search(r"x[34]$", op) is not None
        self.store_data = R[0] if (self.vmem and self.store) else set()
        self.states = 1
        if op == "s_nop": self.states = int(ops[0]) + 1


def need(p, c):
    n = 0
    vec = lambda s: {x for x in s if x[0] in "va"}
    sc = lambda s: {x for x in s if x[0] == "s"}
    if p.valu:
        pw = vec(p.w)
        if c.mfma and pw & (c.r | c.c): n = max(n, 2)
        if p.trans and c.valu and not c.trans and pw & c.r: n = max(n, 1)
        if c.op.startswith(("v_readfirstlane", "v_readlane")) and pw & c.r: n = max(n, 1)
        if c.op.startswith("v_permlane") and pw & c.r: n = max(n, 2)
        if c.valu and ("dpp" in c.text or "quad_perm" in c.text or "row_" in c.text) and pw & c.r: n = max(n, 2)
        ps = sc(p.w)
        if c.vmem and ps & c.r: n = max(n, 5)
        if c.valu and ps & c.r: n = max(n, 2)
    if p.mfma:
        big = {8: 12, 4: 8}[p.passes]
        if c.mfma:
            if p.w & c.r: n = max(n, big)
            if p.w & c.c:
                if p.w == c.c and p.passes == c.passes: pass
                else: n = max(n, big - 2)
            elif p.w & c.w:
                n = max(n, big)
        elif (c.valu or c.vmem or c.ds) and p.w & (c.r | c.w):
            n = max(n, big)
        if c.valu and p.c & c.w: n = max(n, {8: 7, 4: 3}[p.passes])
    if p.salu and ("s", "m0") in p.w and c.dma: n = max(n, 1)
    if p.wide_store and (c.valu or c.mfma) and p.store_data & c.w: n = max(n, 2)
    return n


class Asm:
    def __init__(self):
        self.out = []
        self.hist = []
        self.vm = []
        self.lg = []
        self.nops = 0
        self.log = []

    def raw(self, text):
        self.out.append(text)

    def label(self, name, reset=True):
        self.out.append(name + ":")

    def _push(self, ins):
        self.out.append("  " + ins.text)
        self.hist.append(ins)
        if len(self.hist) > 40: self.hist.pop(0)

    def _wait(self, vm=None, lg=None):
        parts = []
        if vm is not None:
            vm = min(vm, 63)
            parts.append(f"vmcnt({vm})")
            if vm < len(self.vm): self.vm = self.vm[len(self.vm) - vm:] if vm else []
        if lg is not None:
            lg = min(lg, 15)
            parts.append(f"lgkmcnt({lg})")
            if lg < len(self.lg): self.lg = self.lg[len(self.lg) - lg:] if lg else []
        self._push(Ins("s_waitcnt " + " ".join(parts)))

    def wait(self, vm=None, lg=None):
        self._wait(vm, lg)

    def wait_tag(self, tag, lg=None):
        idx = [i for i, (r, t) in enumerate(self.vm) if t == tag]
        if idx:
            self._wait(vm=len(self.vm) - 1 - idx[-1], lg=lg)
        elif lg is not None:
            self._wait(lg=lg)

    def __call__(self, text, tag=None):
        for line in text.strip().split("\n"):
            line = line.strip()
            if not line or line.startswith(";"): continue
            if line.endswith(":"):
                self.label(line[:-1]); continue
            self._one(line, tag)

    def _one(self, text, tag):
        ins = Ins(text)
        touched = ins.r | ins.w | ins.c
        vm = lg = None
        idx = [i for i, (r, t) in enumerate(self.vm) if r & touched]
        if idx: vm = len(self.vm) - 1 - idx[-1]
        idx = [i for i, e in enumerate(self.lg) if e[0] & touched]
        if idx:
            lg = len(self.lg) - 1 - idx[-1]
            if any(e[2] for e in self.lg): lg = 0
        if vm is not None or lg is not None: self._wait(vm, lg)
        dist, pad = 0, 0
        for p in reversed(self.hist):
            n = need(p, ins)
            if n > dist: pad = max(pad, n - dist)
            dist += p.states
            if dist > 20: break
        if pad:
            self.nops += pad
            self.log.append((len(self.out), pad, text))
            self._push(Ins(f"s_nop {pad - 1}"))
        if ins.op == "s_waitcnt":
            m = re.search(r"vmcnt\((\d+)\)", text); m2 = re.search(r"lgkmcnt\((\d+)\)", text)
            self._wait(int(m.group(1)) if m else None, int(m2.group(1)) if m2 else None)
            return
        self._push(ins)
        if ins.vmem:
            self.vm.append((set() if (ins.store or ins.dma) else set(ins.w), tag))
            assert len(self.vm) <= 63, "vmcnt overflow at " + text
        elif ins.ds:
            self.lg.append((set(ins.w), tag, False))
        elif ins.smem:
            self.lg.append((set(ins.w), tag, True))

    def fork(self):
        b = Asm()
        b.hist = list(self.hist); b.vm = list(self.vm); b.lg = list(self.lg)
        return b

    def text(self):
        return "\n".join(self.out) + "\n"
```

```python
import sys, struct, math
from asmlib import Asm

NAME = "concat_heads__grouped_kv_mqa__spectral_fnet__prompt"
QF, KVF, WOF, UF, WS_END = 0x0, 0x200000, 0x240000, 0x300000, 0x500000
DBG = 0x600000
XBYTES, WBYTES, KBYTES, OUTBYTES = 2048 * 896, 448 * 896, 448 * 56, 2048 * 1792
f2u = lambda f: struct.unpack("<I", struct.pack("<f", f))[0]
SCALE = f2u(28 ** -0.5 * math.log2(math.e))
vr = lambda a, n: f"v[{a}:{a + n - 1}]"
ar = lambda a, n: f"a[{a}:{a + n - 1}]"
OPT = dict(stamp=False, force_fb=False)


def srd(A, d, lo, hi, nbytes):
    A(f"s_mov_b32 s{d}, {lo}\ns_mov_b32 s{d+1}, {hi}\ns_mov_b32 s{d+2}, {nbytes}\ns_mov_b32 s{d+3}, 0x20000")


def stamp(A, i):
    if OPT["stamp"]:
        A.raw(f"  s_memtime s[{80 + 2 * i}:{81 + 2 * i}]")


def stamp_out(A, n, base, wsrd):
    if not OPT["stamp"]: return
    A.raw(f"  s_memrealtime s[98:99]")
    A("s_waitcnt vmcnt(0) lgkmcnt(0)")
    A(f"s_lshl_b32 s100, s2, 2\ns_add_u32 s100, s100, s3\ns_lshl_b32 s100, s100, 6\ns_add_u32 s100, s100, {DBG + base}")
    A(f"s_mov_b32 s{wsrd+2}, 0x10000000\nv_mov_b32 v2, 0")
    for i in range(n):
        A(f"v_mov_b32 v1, s{80 + 2 * i}\nbuffer_store_dword v1, v2, s[{wsrd}:{wsrd+3}], s100 offen offset:{4 * i}")
    A(f"v_mov_b32 v1, s98\nbuffer_store_dword v1, v2, s[{wsrd}:{wsrd+3}], s100 offen offset:60")
    A(f"v_mov_b32 v1, s96\nbuffer_store_dword v1, v2, s[{wsrd}:{wsrd+3}], s100 offen offset:56")


SX, SW, SW2, SO = 28, 32, 36, 48
sW, sGRP, sUNIT = 3, 26, 27
sCH = 40


def pre_common(A):
    stamp(A, 0)
    if OPT["stamp"]: A.raw("  s_memrealtime s[96:97]")
    A("""s_load_dwordx16 s[4:19], s[0:1], 0
    s_load_dwordx4 s[20:23], s[0:1], 64
    s_load_dwordx2 s[24:25], s[0:1], 96
    s_cmp_ge_u32 s2, 256
    s_cbranch_scc1 pre_exit
    v_lshrrev_b32 v1, 6, v0
    v_and_b32 v0, 63, v0
    v_readfirstlane_b32 s3, v1
    s_bfe_u32 s26, s2, 0x20001
    s_lshl_b32 s26, s26, 2
    s_lshr_b32 s47, s2, 6
    s_add_u32 s26, s26, s47
    s_bfe_u32 s27, s2, 0x30003
    s_cmp_eq_u32 s27, 7
    s_cselect_b32 s40, 3, s27""")
    for i in range(1, 7):
        A(f"s_add_u32 s{40+i}, s{39+i}, 1\ns_cmp_eq_u32 s{40+i}, 7\ns_cselect_b32 s{40+i}, 0, s{40+i}")
    A("""v_lshrrev_b32 v1, 3, v0
    v_lshrrev_b32 v3, 4, v0
    v_and_b32 v2, 7, v0
    v_xor_b32 v4, v2, v3
    v_lshlrev_b32 v4, 4, v4
    s_bitcmp1_b32 s2, 0
    s_cbranch_scc1 pre_fnet""")


def dma_addr(A, dst, n, rowstride):
    A(f"s_mov_b32 s47, {rowstride}\nv_mad_u32_u24 v{dst}, v1, s47, v4")
    A(f"v_xor_b32 v{dst+1}, 64, v{dst}\nv_add_u32 v{dst+1}, {8*rowstride-1024}, v{dst+1}")
    for a in range(2, n):
        A(f"v_add_u32 v{dst+a}, {2*(8*rowstride-1024)}, v{dst+a-2}")


def qkv_path(A, kv):
    XB = 57344
    vXA, vWA = 8, 12
    vXR, vWR = 16, 24
    XF, WF, ACC = 32, 64, 128
    def xdma(i):
        A(f"s_mov_b32 m0, s70" if i in (0, 6) else f"s_add_u32 m0, s70, {16384*i}")
        A(f"s_lshl_b32 s47, s{sCH+i}, 7\ns_add_u32 s47, s47, s71")
        for a in range(4):
            A(f"buffer_load_dwordx4 v{vXA+a}, s[{SX}:{SX+3}], s47 offen offset:{1024*a} lds", tag=f"x{i}")
    if kv:
        A(f"v_lshlrev_b32 v{vWA}, 4, v0\ns_mul_i32 s72, s3, 896")
        srd(A, SW, "s8", "s9", KBYTES); srd(A, SW2, "s10", "s11", KBYTES)
    else:
        A(f"""v_and_b32 v5, 1, v3
        v_lshlrev_b32 v5, 2, v5
        v_xor_b32 v5, v5, v2
        v_lshlrev_b32 v5, 4, v5
        v_mad_u32_u24 v{vWA}, v1, s47, v5
        v_add_u32 v{vWA+1}, 6144, v{vWA}
        s_lshl_b32 s72, s3, 11
        s_mul_i32 s73, s3, {16*896}
        s_lshl_b32 s74, s27, 7
        s_add_u32 s73, s73, s74""")
        srd(A, SW, "s6", "s7", WBYTES)
    xdma(0)
    for i in range(7):
        if kv:
            A(f"""s_add_u32 m0, s72, {8192*i}
            s_mul_i32 s47, s{sCH+i}, 3584
            s_add_u32 s47, s47, s72
            buffer_load_dwordx4 v{vWA}, s[{SW}:{SW+3}], s47 offen lds
            s_add_u32 m0, s72, {8192*i+4096}
            buffer_load_dwordx4 v{vWA}, s[{SW2}:{SW2+3}], s47 offen lds""", tag="w")
        else:
            A(f"""s_add_u32 m0, s72, {8192*i}
            s_mul_i32 s47, s{sCH+i}, {64*896}
            s_add_u32 s47, s47, s73
            buffer_load_dwordx4 v{vWA}, s[{SW}:{SW+3}], s47 offen lds
            buffer_load_dwordx4 v{vWA+1}, s[{SW}:{SW+3}], s47 offen offset:1024 lds""", tag="w")
    for i in range(1, 6): xdma(i)
    stamp(A, 1)
    A(f"""v_and_b32 v5, 31, v0
    v_lshrrev_b32 v6, 5, v0
    v_bfe_u32 v7, v0, 1, 3
    v_xor_b32 v7, v7, v6
    v_lshlrev_b32 v7, 4, v7
    v_lshl_add_u32 v7, v5, 7, v7
    v_add_u32 v{vXR}, s70, v7""")
    for s in range(1, 4): A(f"v_xor_b32 v{vXR+s}, {32*s}, v{vXR}")
    for s in range(4): A(f"v_add_u32 v{vXR+4+s}, 0x10000, v{vXR+s}")
    A(f"""v_bfe_u32 v7, v0, 2, 2
    v_lshl_add_u32 v7, v6, 3, v7
    v_mul_u32_u24 v7, {56 if kv else 128}, v7
    v_and_b32 v26, 3, v0
    v_lshl_add_u32 v7, v26, 3, v7
    v_and_b32 v26, 1, v3
    v_lshl_add_u32 v{vWR}, v26, 5, v7""")
    if kv:
        A(f"v_add_u32 v{vWR+1}, 4096, v{vWR}")
    else:
        A(f"v_and_b32 v26, 1, v1\nv_lshl_add_u32 v{vWR}, v26, 6, v{vWR}\nv_xor_b32 v{vWR+1}, 64, v{vWR}")
    srd(A, SO, "s24", "s25", WS_END)
    rowb = 56 if kv else 128
    if kv:
        A(f"""v_and_b32 v27, 0x33, v0
        v_bfe_u32 v26, v0, 2, 1
        v_lshl_add_u32 v27, v26, 3, v27
        v_bfe_u32 v26, v0, 3, 1
        v_lshl_add_u32 v27, v26, 2, v27
        v_lshlrev_b32 v27, 4, v27
        s_lshl_b32 s75, s26, 2
        s_add_u32 s75, s75, s3
        s_lshl_b32 s75, s75, 12
        s_add_u32 s75, s75, {KVF}
        s_mov_b32 s76, {SCALE}
        s_mov_b32 s77, {SCALE}
        v_mov_b32 v28, 0x3f803f80
        v_mov_b32 v29, 0x3f80
        v_cmp_eq_u32 vcc, 28, v5
        v_cndmask_b32 v30, 0, v28, vcc
        v_cmp_lt_u32 s[78:79], 31, v0
        v_cmp_lt_u32 vcc, 27, v5""")
    else:
        A(f"""v_bfe_u32 v27, v0, 3, 2
        v_mul_u32_u24 v27, 7168, v27
        v_lshl_add_u32 v27, v6, 6, v27
        v_lshl_add_u32 v27, v2, 3, v27
        s_lshl_b32 s75, s26, 2
        s_add_u32 s75, s75, s3
        s_mul_i32 s75, s75, {4*7168}
        s_lshl_b32 s76, s27, 10
        s_add_u32 s75, s75, s76""")

    def wreads(i):
        r = []
        for s in range(4):
            for T in range(2):
                for rd in range(2):
                    d = WF + 32 * (i & 1) + 8 * s + 4 * T + 2 * rd
                    r.append(f"ds_read_b64_tr_b16 {vr(d,2)}, v{vWR+T} offset:{8192*i + rowb*(16*s+4*rd)}")
        return r

    def xreads(i):
        sl = i % 6
        A.wait_tag(f"x{i}")
        for s in range(4):
            A(f"ds_read_b128 {vr(XF+16*(i&1)+4*s,4)}, v{vXR+s+4*(sl>>2)} offset:{16384*(sl&3)}")

    xreads(0)
    A.wait_tag("w", lg=0)
    xdma(6)
    A("s_barrier")
    stamp(A, 2)
    for r in wreads(0): A(r)
    for i in range(7):
        nxt = wreads(i + 1) if i < 6 else []
        for m in range(8):
            s, T = m >> 1, m & 1
            if m == 5 and i < 6: xreads(i + 1)
            w_, x_ = vr(WF + 32 * (i & 1) + 8 * s + 4 * T, 4), vr(XF + 16 * (i & 1) + 4 * s, 4)
            a_, b_ = (x_, w_) if (kv and T == 1) else (w_, x_)
            c_ = "0" if (i == 0 and s == 0) else vr(ACC + 16 * T, 16)
            A(f"v_mfma_f32_32x32x16_bf16 {vr(ACC+16*T,16)}, {a_}, {b_}, {c_}")
            for r in nxt[2 * m:2 * m + 2]: A(r)
    stamp(A, 3)
    P = XF
    if kv:
        for j in range(8): A(f"v_pk_mul_f32 {vr(ACC+2*j,2)}, {vr(ACC+2*j,2)}, s[76:77]")
        for j in range(8): A(f"v_cvt_pk_bf16_f32 v{P+j}, v{ACC+2*j}, v{ACC+2*j+1}")
        A(f"v_cndmask_b32 v{P+6}, v{P+6}, v28, s[78:79]\nv_cndmask_b32 v{P+7}, v{P+7}, v29, s[78:79]")
        for s in range(2): A(f"buffer_store_dwordx4 {vr(P+4*s,4)}, v27, s[{SO}:{SO+3}], s75 offen offset:{1024*s}")
        for j in range(8, 16): A(f"v_cvt_pk_bf16_f32 v{P+j}, v{ACC+2*j}, v{ACC+2*j+1}")
        for j in range(8, 16): A(f"v_cndmask_b32 v{P+j}, v{P+j}, v30, vcc")
        for s in range(2, 4): A(f"buffer_store_dwordx4 {vr(P+4*s,4)}, v{vWA}, s[{SO}:{SO+3}], s75 offen offset:{1024*s}")
    else:
        for q in range(8):
            A(f"v_cvt_pk_bf16_f32 v{P+2*q}, v{ACC+4*q}, v{ACC+4*q+1}\nv_cvt_pk_bf16_f32 v{P+2*q+1}, v{ACC+4*q+2}, v{ACC+4*q+3}")
            A(f"buffer_store_dwordx2 {vr(P+2*q,2)}, v27, s[{SO}:{SO+3}], s75 offen offset:{128*q}")
    stamp(A, 4)
    stamp_out(A, 5, 0, SO)
    A("s_endpgm")


def fnet_path(A):
    FB = 114688
    vXA, vFA = 8, 12
    vXR, vFR = 16, 20
    CF, ACC, XF, FF = 24, 48, 80, 144
    dma_addr(A, vXA, 4, 64 * 896)
    dma_addr(A, vFA, 2, 1792)
    A(f"""s_and_b32 s71, s26, 7
    s_lshl_b32 s71, s71, 2
    s_add_u32 s71, s71, s3
    s_lshl_b32 s71, s71, 1
    s_lshr_b32 s47, s26, 3
    s_add_u32 s71, s71, s47
    s_mul_i32 s71, s71, 896
    s_lshl_b32 s70, s3, 12
    s_lshl_b32 s72, s3, 11
    s_lshr_b32 s74, s3, 1
    s_lshl_b32 s73, s27, 5
    s_add_u32 s73, s73, s74
    s_mul_i32 s73, s73, 896""")
    srd(A, SX, "s14", "s15", XBYTES)
    A(f"""s_bitcmp1_b32 s3, 0
    s_cselect_b32 s{SW}, s22, s20
    s_cselect_b32 s{SW+1}, s23, s21
    s_mov_b32 s{SW+2}, {WBYTES}
    s_mov_b32 s{SW+3}, 0x20000""")
    for i in range(7):
        A(f"s_add_u32 m0, s70, {16384*i}\ns_lshl_b32 s52, s{sCH+i}, 7\ns_add_u32 s47, s52, s71")
        for a in range(4):
            A(f"buffer_load_dwordx4 v{vXA+a}, s[{SX}:{SX+3}], s47 offen offset:{1024*a} lds", tag=f"x{i}")
        if i < 4:
            A(f"s_add_u32 m0, s72, {FB+8192*i}\ns_add_u32 s47, s52, s73")
            for a in range(2):
                A(f"buffer_load_dwordx4 v{vFA+a}, s[{SW}:{SW+3}], s47 offen offset:{1024*a} lds", tag=f"x{i}")
    stamp(A, 1)
    srd(A, SO, "s24", "s25", WS_END)
    A(f"""v_and_b32 v5, 15, v0
    s_and_b32 s75, s3, 1
    s_add_u32 s47, s27, s74
    s_cmp_eq_u32 s47, 8
    s_cbranch_scc1 pre_wo""")
    W = A.fork()
    A(f"""v_bfe_u32 v7, v0, 1, 3
    v_xor_b32 v7, v7, v3
    v_lshlrev_b32 v7, 4, v7
    v_lshl_add_u32 v7, v5, 7, v7
    s_lshl_b32 s47, s75, 13
    v_add_u32 v{vXR}, s47, v7
    v_xor_b32 v{vXR+1}, 64, v{vXR}
    v_add_u32 v{vXR+2}, 0x10000, v{vXR}
    v_add_u32 v{vXR+3}, 0x10000, v{vXR+1}
    s_lshl_b32 s47, s74, 12
    s_add_u32 s47, s47, {FB}
    v_add_u32 v{vFR}, s47, v7
    v_xor_b32 v{vFR+1}, 64, v{vFR}
    s_mul_i32 s76, s74, 0x80008000""")
    T = XF
    A(f"""v_cvt_f32_u32 v6, v5
    v_mul_f32 v6, {f2u(1/32)}, v6
    v_lshlrev_b32 v7, 2, v3
    v_cvt_f32_u32 v7, v7
    v_mul_f32 v{T}, v6, v7
    v_fma_f32 v{T+4}, v6, s77, v{T}""".replace("v_fma_f32", "s_mov_b32 s77, 0x41800000\nv_fma_f32"))
    for j in (1, 2, 3, 5, 6, 7): A(f"v_add_f32 v{T+j}, v6, v{T+j-1}")
    for j in range(8): A(f"v_cos_f32 v{T+8+j}, v{T+j}")
    for j in range(8): A(f"v_sin_f32 v{T+j}, v{T+j}")
    for j in range(4): A(f"v_cvt_pk_bf16_f32 v{CF+j}, v{T+8+2*j}, v{T+9+2*j}")
    for j in range(4): A(f"v_cvt_pk_bf16_f32 v{CF+4+j}, v{T+2*j}, v{T+1+2*j}")
    for j in range(4): A(f"v_xor_b32 v{CF+8+j}, 0x80008000, v{CF+4+j}")
    for j in range(12): A(f"v_xor_b32 v{CF+12+j}, 0x80000000, v{CF+j}")
    A(f"""v_lshlrev_b32 v22, 18, v3
    v_lshl_add_u32 v22, v5, 4, v22
    s_lshl_b32 s60, s26, 12
    s_lshl_b32 s47, s74, 11
    s_add_u32 s60, s60, s47
    s_lshl_b32 s47, s27, 8
    s_add_u32 s60, s60, s47
    s_lshl_b32 s47, s75, 3
    s_add_u32 s60, s60, s47
    s_add_u32 s60, s60, {UF}""")
    for k in range(1, 8): A(f"s_add_u32 s{60+k}, s60, {(k&3)*65536 + (k>>2)*(1<<20)}")

    def reads(i):
        A.wait_tag(f"x{i}")
        A("s_barrier")
        if i == 0: stamp(A, 2)
        for sb in range(2):
            j = 2 * i + sb
            if j < 7:
                for ty in range(2):
                    A(f"ds_read_b128 {vr(FF+8*j+4*ty,4)}, v{vFR+sb} offset:{8192*i+2048*ty}")
            for k in range(4):
                A(f"ds_read_b128 {vr(XF+32*(i&1)+16*sb+4*k,4)}, v{vXR+sb+2*(i>>2)} offset:{16384*(i&3)+2048*k}")

    reads(0)
    pend = []
    for i in range(7):
        for m in range(16):
            sb, k, ty = m >> 3, (m >> 1) & 3, m & 1
            j = 2 * i + sb
            if m == 10 and i < 6: reads(i + 1)
            d = vr(ACC + 8 * k + 4 * ty, 4)
            A(f"v_mfma_f32_16x16x32_bf16 {d}, {vr(XF+32*(i&1)+16*sb+4*k,4)}, {vr(FF+8*(j%7)+4*ty,4)}, {'0' if j == 0 else d}")
            if pend: A(pend.pop(0))
            if (m & 7) == 7 and j < 7:
                pend += [f"v_xor_b32 v{FF+8*j+r}, s76, v{FF+8*j+r}" for r in range(8)]
    stamp(A, 3)
    BF, U = XF, XF + 16
    for s2 in range(2):
        for ty in range(2):
            for rt in range(2):
                for h in range(2):
                    a = ACC + 8 * (2 * s2 + rt) + 4 * ty + 2 * h
                    A(f"v_cvt_pk_bf16_f32 v{BF+8*s2+4*ty+2*rt+h}, v{a}, v{a+1}")
    for tt in range(2):
        for ph in range(2):
            for s2 in range(2):
                for c in range(2):
                    d = vr(U + 16 * tt + 8 * s2 + 4 * c, 4)
                    if ph == 0: a_, b_, c_ = CF + 12 * tt, BF + 8 * s2 + 4 * c, "0"
                    else: a_, b_, c_ = CF + 12 * tt + 4 + 4 * c, BF + 8 * s2 + 4 * (1 - c), d
                    A(f"v_mfma_f32_16x16x32_bf16 {d}, {vr(a_,4)}, {vr(b_,4)}, {c_}")
    P = ACC
    for tt in range(2):
        for r in range(4):
            k = 4 * tt + r
            for s2 in range(2):
                u = U + 16 * tt + 8 * s2 + r
                A(f"v_cvt_pk_bf16_f32 v{P+2*k+s2}, v{u}, v{u+4}")
            A(f"buffer_store_dwordx2 {vr(P+2*k,2)}, v22, s[{SO}:{SO+3}], s{60+k} offen")
    stamp(A, 4)
    stamp_out(A, 5, 0, SO)
    A("s_endpgm")

    B = W
    B.label("pre_wo")
    L3, L1, PK = 16, 64, 80
    B(f"""s_lshl_b32 s52, s26, 1
    s_add_u32 s52, s52, s75
    s_cmp_lt_u32 s52, 28
    s_cselect_b32 s{SW2+2}, {WBYTES}, 0
    s_cselect_b32 s{SO+2}, {WS_END}, 0
    s_mov_b32 s{SW2}, s12
    s_mov_b32 s{SW2+1}, s13
    s_mov_b32 s{SW2+3}, 0x20000
    s_lshr_b32 s53, s52, 2
    s_and_b32 s54, s52, 3
    s_mul_i32 s55, s53, {64*896}
    s_mul_i32 s47, s54, 224
    s_add_u32 s55, s55, s47
    v_mul_u32_u24 v6, 3584, v3
    v_mad_u32_u24 v7, v5, 12, v6
    v_lshl_add_u32 v6, v5, 1, v6
    v_lshlrev_b32 v8, 4, v0
    s_mul_i32 s56, s54, {98*1024}
    s_lshl_b32 s47, s53, 11
    s_add_u32 s56, s56, s47
    s_add_u32 s56, s56, {WOF}
    s_mov_b32 s57, 0x05040100
    s_mov_b32 s58, 0x07060302""")

    def woloads(rh):
        for hi in range(2):
            B(f"s_add_u32 s47, s55, {(32*hi+16*rh)*896}")
            for r in range(4):
                k = 8 * rh + 4 * hi + r
                B(f"buffer_load_dwordx3 {vr(L3+112+4*k,3) if False else vr(112+4*k,3)}, v7, s[{SW2}:{SW2+3}], s47 offen offset:{896*r}")
                B(f"buffer_load_ushort v{112+4*k+3}, v6, s[{SW2}:{SW2+3}], s47 offen offset:{896*r+192}")
    woloads(0)
    for i in range(7):
        B.wait_tag(f"x{i}")
        B("s_barrier")
        if i == 0: woloads(1)
    for rh in range(2):
        for tau in range(7):
            pos = 0 if tau == 6 else tau + 1
            d = 16 + 4 * (7 * rh + tau)
            for r in range(4):
                lo, hi = 112 + 4 * (8 * rh + r) + (tau >> 1), 112 + 4 * (8 * rh + 4 + r) + (tau >> 1)
                B(f"v_perm_b32 v{d+r}, v{hi}, v{lo}, s{57 + (tau & 1)}")
            B(f"s_add_u32 s47, s56, {pos*7*2048}")
            B(f"buffer_store_dwordx4 {vr(d,4)}, v8, s[{SO}:{SO+3}], s47 offen offset:{1024*rh}")
    stamp(B, 4)
    stamp_out(B, 5, 0, SO)
    B("s_endpgm")
    return B


def gen_pre():
    A = Asm()
    pre_common(A)
    F = A.fork()
    dma_addr(A, 8, 4, 896)
    A(f"""s_lshl_b32 s71, s26, 2
    s_add_u32 s71, s71, s3
    s_mul_i32 s71, s71, {32*896}
    s_lshl_b32 s70, s3, 12
    s_add_u32 s70, s70, 57344""")
    srd(A, SX, "s4", "s5", XBYTES)
    A("s_cmp_eq_u32 s27, 7\ns_cbranch_scc1 pre_kv")
    K = A.fork()
    qkv_path(A, False)
    A.label("pre_exit"); A("s_endpgm")
    K.label("pre_kv"); qkv_path(K, True)
    F.label("pre_fnet"); W = fnet_path(F)
    return [A, F, W, K]


SWS, SOUT, SU, SOF = 8, 12, 16, 20
SB, ACC, QR, KVR, WV = 8, 56, 120, 152, 216
RED, OL, FLG, MX = 0, 49152, 57344, 57600
LDS2 = 57600 + 4096
MTILDE = 0xC280


def q_loads(A, order):
    for (jj, i) in order:
        A(f"buffer_load_dwordx2 {vr(QR+8*jj+2*i,2)}, v3, s[{SWS}:{SWS+3}], s{24+jj} offen offset:{128*i}")


def gen_main():
    A = Asm()
    stamp(A, 0)
    if OPT["stamp"]: A.raw("  s_memrealtime s[96:97]")
    A(f"""s_load_dwordx2 s[4:5], s[0:1], 96
    s_load_dwordx2 s[6:7], s[0:1], 80
    s_cmp_ge_u32 s2, 256
    s_cbranch_scc1 main_exit
    v_lshrrev_b32 v1, 6, v0
    v_and_b32 v0, 63, v0
    v_readfirstlane_b32 s3, v1
    s_mov_b32 s47, 0
    v_lshlrev_b32 v1, 4, v0
    v_bfe_u32 v3, v0, 3, 2
    v_mul_u32_u24 v3, 448, v3
    v_lshrrev_b32 v4, 5, v0
    v_lshl_add_u32 v3, v4, 6, v3
    v_and_b32 v4, 7, v0
    v_lshl_add_u32 v3, v4, 3, v3
    s_mul_i32 s28, s2, 7168""")
    for jj in range(4):
        A(f"s_add_u32 s29, s3, {jj+1}\ns_and_b32 s{36+jj}, s29, 3\ns_mul_i32 s29, s{36+jj}, 1792\ns_add_u32 s{24+jj}, s28, s29")
        A(f"v_mov_b32 v{QR+8*jj+6}, {MTILDE}\nv_mov_b32 v{QR+8*jj+7}, 0")
    srd(A, SWS, "s4", "s5", WS_END)
    A.label("main_restart")
    A(f"s_lshl_b32 s30, s3, 16\ns_add_u32 s30, s30, {KVF}\ns_mov_b64 exec, 0xffffffff".replace(
        "s_mov_b64 exec, 0xffffffff", "s_mov_b32 exec_hi, 0"))
    q_loads(A, [(jj, 3) for jj in range(4)])
    A("s_mov_b32 exec_hi, -1")

    def kvload(t, part):
        so = "s30" if part < 2 else "s31"
        r = [f"buffer_load_dwordx4 {vr(KVR+16*(t&3)+4*part,4)}, v1, s[{SWS}:{SWS+3}], {so} offen offset:{1024*part}"]
        if part & 1: r.append(f"s_add_u32 {so}, {so}, 4096")
        return "\n".join(r)

    A("s_mov_b32 s31, s30")
    q_loads(A, [(0, 0), (0, 1), (0, 2)])
    A(kvload(0, 0)); A(kvload(0, 1))
    q_loads(A, [(1, 0), (1, 1), (1, 2)])
    q_loads(A, [(2, 0), (2, 1), (2, 2)])
    A(kvload(0, 2)); A(kvload(0, 3))
    q_loads(A, [(3, 0), (3, 1), (3, 2)])
    for t in range(1, 4):
        for p in range(4): A(kvload(t, p))
    stamp(A, 1)
    srd(A, SOUT, "s6", "s7", OUTBYTES)
    A(f"""s_and_b32 s33, s2, 7
    s_cmp_lt_u32 s33, 7
    s_cselect_b32 s{SU+2}, {WS_END}, 0
    s_cselect_b32 s{SOF+2}, {OUTBYTES}, 0
    s_mov_b32 s{SU}, s4
    s_mov_b32 s{SU+1}, s5
    s_mov_b32 s{SU+3}, 0x20000
    s_mov_b32 s{SOF}, s6
    s_mov_b32 s{SOF+1}, s7
    s_mov_b32 s{SOF+3}, 0x20000
    s_lshl_b32 s33, s33, 1
    s_lshr_b32 s29, s3, 1
    s_add_u32 s33, s33, s29
    s_lshr_b32 s34, s2, 3
    s_and_b32 s35, s3, 1
    s_lshl_b32 s35, s35, 9
    s_add_u32 s35, s35, s34
    s_mul_i32 s32, s3, {98*1024}
    s_add_u32 s32, s32, {WOF}
    v_mov_b32 v2, 0xdddd""")
    CO, DD, T = WV, WV + 16, SB + 16
    vU, vB, vB0 = WV + 32, WV + 33, WV + 34
    A(f"""v_and_b32 v4, 15, v0
    v_lshrrev_b32 v5, 4, v0
    v_lshlrev_b32 v6, 7, v5
    v_add_u32 v6, s35, v6
    v_sub_u32 v7, 928, v6
    v_sub_u32 v{vB0}, 0x800, v6
    v_and_b32 v{vB0}, 0x7ff, v{vB0}
    v_sub_u32 v{vU}, 15, v4
    s_cmp_ge_u32 s33, 7
    s_cselect_b64 vcc, -1, 0
    s_lshl_b32 s29, s33, 4
    s_sub_u32 s40, 209, s29
    s_cmp_ge_u32 s33, 7
    s_cselect_b32 s40, s40, s29
    s_cselect_b32 s41, -16, 0""")
    for k in range(1, 8):
        r, m = k & 3, k >> 2
        A(f"s_mov_b32 s{48+k}, {(32*r+1024*m)*1792}\ns_cselect_b32 s{48+k}, {(96-32*r+1024*(1-m))*1792}, s{48+k}")
    A(f"""s_lshl_b32 s40, s40, 4
    s_lshl_b32 s29, s34, 16
    s_add_u32 s40, s40, s29
    s_add_u32 s40, s40, {UF}
    s_add_u32 s41, s41, s40
    s_add_u32 s41, s41, 2048
    v_cndmask_b32 v{vU}, v4, v{vU}, vcc
    v_lshlrev_b32 v{vU}, 4, v{vU}
    v_lshl_add_u32 v{vU}, v5, 12, v{vU}
    v_cndmask_b32 v{vB}, v6, v7, vcc
    v_cndmask_b32 v{vB0}, v6, v{vB0}, vcc
    s_lshl_b32 s29, s33, 6
    s_add_u32 s29, s29, 896
    v_lshl_add_u32 v7, v4, 2, s29
    s_mov_b32 s29, 1792
    v_mad_u32_u24 v{vB}, v{vB}, s29, v7
    v_mad_u32_u24 v{vB0}, v{vB0}, s29, v7""")
    UL = []
    for sg in range(4):
        for pi in range(2):
            UL.append(f"buffer_load_dwordx4 {ar(224+8*sg+4*pi,4)}, v{vU}, s[{SU}:{SU+3}], s{40+pi} offen" +
                      (f"\ns_add_u32 s{40+pi}, s{40+pi}, 16384" if sg < 3 else ""))
    for u in UL: A(u)
    A(f"""v_lshl_add_u32 v6, v4, 5, s35
    v_cvt_f32_u32 v6, v6
    v_mul_f32 v6, {f2u(1/2048)}, v6
    v_lshlrev_b32 v7, 3, v5
    v_cvt_f32_u32 v7, v7
    v_mul_f32 v{T}, v6, v7
    s_mov_b32 s29, 0x42000000
    v_fma_f32 v{T+4}, v6, s29, v{T}
    v_add_f32 v{T+8}, v6, v{T}
    v_add_f32 v{T+12}, v6, v{T+4}""")
    for i in range(1, 4):
        for sg in range(4): A(f"v_fma_f32 v{T+4*sg+i}, v6, 2.0, v{T+4*sg+i-1}")
    for j in range(16): A(f"v_cos_f32 v{T+16+j}, v{T+j}\nv_sin_f32 v{T+j}, v{T+j}")
    for j in range(16): A(f"v_cvt_pk_bf16_f32 v{CO+j}, v{T+16+j}, v{T+j}")
    for j in range(32): A(f"v_mov_b64 {vr(ACC+2*j,2)}, 0")

    free_after = {}
    womap = [("a", 8 * o, 0) for o in range(28)] + [("a", 224 + 8 * o, 20) for o in range(4)] + [("v", WV + 8 * o, 20) for o in range(5)]
    late = [(KVR + 0, 51), (KVR + 8, 53), (KVR + 16, 55), (KVR + 24, 57), (KVR + 32, 59), (QR, 60), (KVR + 40, 61), (QR + 8, 61),
            (QR + 16, 62), (KVR + 48, 63), (QR + 24, 63), (KVR + 56, 65)]
    womap += [("v", r, s) for r, s in late]
    wq = []
    for o, (k, r, s) in enumerate(womap):
        for h in range(2):
            f = 2 * o + h
            t = f"buffer_load_dwordx4 {k}[{r+4*h}:{r+4*h+3}], v1, s[{SWS}:{SWS+3}], s32 offen offset:{1024*(f&3)}"
            if (f & 3) == 3: t += "\ns_add_u32 s32, s32, 4096"
            wq.append((s, t))
    st2 = []
    for sg in range(4):
        for pi in range(2):
            d = vr(DD + 8 * (sg >> 1) + 4 * pi, 4)
            st2.append(f"v_mfma_f32_16x16x32_bf16 {d}, {vr(CO+4*sg,4)}, {ar(224+8*sg+4*pi,4)}, {'0' if (sg & 1) == 0 else d}")
    st2.append(None); st2.append(None)
    for j in range(4):
        st2.append(f"v_pk_add_f32 {vr(CO+2*j,2)}, {vr(DD+2*j,2)}, {vr(DD+8+2*j,2)}\n"
                   f"v_pk_add_f32 {vr(CO+8+2*j,2)}, {vr(DD+2*j,2)}, {vr(DD+8+2*j,2)} neg_lo:[0,1] neg_hi:[0,1]")
    for k in range(8):
        r, m = k & 3, k >> 2
        st2.append(f"v_cvt_pk_bf16_f32 v{DD+k}, v{CO+8*m+r}, v{CO+8*m+4+r}\n" +
                   (f"buffer_store_dword v{DD+k}, v{vB0}, s[{SOF}:{SOF+3}], 0 offen" if k == 0 else
                    f"buffer_store_dword v{DD+k}, v{vB}, s[{SOF}:{SOF+3}], s{48+k} offen"))
    ST2_AT = 12

    def qk(i, h):
        b = SB + 16 * (i % 3)
        return (f"v_mfma_f32_32x32x16_bf16 {vr(b,16)}, {vr(KVR+16*((i>>2)&3)+4*h,4)}, {vr(QR+8*(i&3)+4*h,4)}, "
                f"{'0' if h == 0 else vr(b,16)}")

    def pv(i, h):
        b = SB + 16 * (i % 3)
        return f"v_smfmac_f32_32x32x32_bf16 {vr(ACC+16*(i&3),16)}, {vr(KVR+16*((i>>2)&3)+8+4*h,4)}, {vr(b+8*h,8)}, v2"

    AD = SB + 16
    def redw(jj):
        return [f"ds_write_b128 v4, {vr(ACC+16*jj+4*k,4)} offset:{RED+4096*jj+1024*k}" for k in range(4)]
    A(f"s_mul_i32 s29, s3, 12288\nv_add_u32 v4, s29, v1")
    for jj in range(3):
        A(f"s_mul_i32 s29, s{38-jj}, 12288\nv_add_u32 v{5+jj}, s29, v1")

    A(qk(0, 0)); A(qk(0, 1))
    stamp(A, 2)
    credit = 0.0
    RATE = OPT.get("rate", 2.45)
    START = OPT.get("start", 4)
    for i in range(64):
        extra = [[], [], [], []]
        loads = []
        if i % 4 == 3 and i // 4 + 4 < 16: loads += [kvload(i // 4 + 4, 0), kvload(i // 4 + 4, 1)]
        if i % 4 == 1 and i >= 5 and i // 4 + 3 < 16: loads += [kvload(i // 4 + 3, 2), kvload(i // 4 + 3, 3)]
        if i >= START:
            credit += RATE - len(loads)
            while credit >= 1 and wq and wq[0][0] <= i and len(loads) < 4:
                loads.append(wq.pop(0)[1]); credit -= 1
            credit = min(credit, 2.0)
        for k, l in enumerate(loads): extra[k].append(l)
        if i >= ST2_AT:
            for k in range(4):
                if st2:
                    x = st2.pop(0)
                    if x: extra[k].append(x)
        if i == 62:
            for k, x in enumerate(redw(0)): extra[2 + (k >> 1)].append(x)
        if i == 63:
            for k, x in enumerate(redw(1)): extra[2 + (k >> 1)].append(x)
        b = SB + 16 * (i % 3)
        mm = [qk(i + 1, 0), qk(i + 1, 1)] if i < 63 else [None, None]
        mm += [pv(i - 1, 0), pv(i - 1, 1)] if i > 0 else [None, None]
        if i == 63: mm = [None, mm[2], mm[3], pv(63, 0)]
        for k in range(4):
            if mm[k]: A(mm[k])
            for e in range(4):
                A(f"v_exp_f32 v{b+4*k+e}, v{b+4*k+e}")
                if e == 0:
                    for x in extra[k]: A(x)
        if i == 31: stamp(A, 3)
    assert not st2
    stamp(A, 4)
    vOW, vOW3, vAR, vIX, vO3, vO1, vL, vCK = [AD + k for k in range(8)]
    A(f"v_and_b32 v{vOW}, 7, v0\nv_bfe_u32 v{vOW3}, v0, 1, 2")
    A(pv(63, 1))
    while wq and wq[0][0] <= 64: A(wq.pop(0)[1])
    for x in redw(2): A(x)
    A(f"""v_mul_u32_u24 v{vOW}, 896, v{vOW}
    v_lshl_add_u32 v{vOW}, v{vOW3}, 5, v{vOW}
    v_bfe_u32 v{vOW3}, v0, 3, 2
    v_mad_u32_u24 v{vOW}, v{vOW3}, 56, v{vOW}
    v_lshrrev_b32 v{vOW3}, 5, v0
    v_lshl_add_u32 v{vOW}, v{vOW3}, 3, v{vOW}
    s_mul_i32 s29, s3, 224
    s_add_u32 s42, s29, {OL}
    v_add_u32 v{vOW}, s42, v{vOW}""")
    for s, t in wq: A(t)
    A.wait(lg=0)
    A("s_barrier")
    for jj in range(3):
        for k in range(4):
            A(f"ds_read_b128 {vr(ACC+16*jj+4*((k+3)&3),4)}, v{5+jj} offset:{RED+4096*jj+1024*((k+3)&3)}")
    A(f"""v_bfe_u32 v{vAR}, v0, 1, 3
    v_mul_u32_u24 v{vAR}, 896, v{vAR}
    v_bfe_u32 v{vIX}, v0, 2, 2
    v_lshl_add_u32 v{vAR}, v{vIX}, 5, v{vAR}
    v_lshrrev_b32 v{vO1}, 4, v0
    v_lshl_add_u32 v{vAR}, v{vO1}, 4, v{vAR}
    v_and_b32 v{vIX}, 1, v0
    v_lshl_add_u32 v{vAR}, v{vIX}, 6, v{vAR}
    v_mul_u32_u24 v{vIX}, 0x5555, v{vIX}
    v_add_u32 v{vIX}, 0x8888, v{vIX}""")
    O = ACC + 48
    for jj in range(3):
        for k in range(4):
            kk = (k + 3) & 3
            for h in range(2):
                A(f"v_pk_add_f32 {vr(O+4*kk+2*h,2)}, {vr(O+4*kk+2*h,2)}, {vr(ACC+16*jj+4*kk+2*h,2)}")
            if jj == 2 and k == 0: A(f"v_mov_b32 v{vL}, v{O+12}\nv_mov_b32 v{vCK}, v{O+12}")
            if jj == 2 and k == 1: A(f"v_permlane32_swap_b32 v{vCK}, v{vL}")
            if jj == 2 and k == 2: A(f"v_rcp_f32 v{AD+8}, v{vL}")
    PK = ACC + 32
    for a in range(4):
        for h in range(2):
            A(f"v_pk_mul_f32 {vr(PK+4*a+2*h,2)}, {vr(O+4*a+2*h,2)}, {vr(AD+8,2)} op_sel_hi:[1,0]")
        for h in range(2):
            A(f"v_cvt_pk_bf16_f32 v{PK+4*a+h}, v{PK+4*a+2*h}, v{PK+4*a+2*h+1}")
        if a == 3: A("s_mov_b32 exec_hi, 0")
        A(f"ds_write_b64 v{vOW}, {vr(PK+4*a,2)} offset:{16*a}")
        if a == 3: A("s_mov_b32 exec_hi, -1")
    D = ACC
    for j in range(4): A(f"v_mov_b64 {vr(D+2*j,2)}, 0")
    A.wait(lg=0)
    A("s_barrier")
    stamp(A, 5)
    AF = [SB + 32 + 4 * u for u in range(4)] + [SB + 4 * u for u in range(3)]
    for u in range(7): A(f"ds_read_b128 {vr(AF[u],4)}, v{vAR} offset:{OL+128*u}")
    for j in range(4, 14): A(f"v_mov_b64 {vr(D+2*j,2)}, 0")
    side = f"""v_mul_u32_u24 v{vO3}, 3584, v{vO1}
    v_and_b32 v{vO1}, 15, v0
    v_lshl_add_u32 v{AD+9}, v{vO1}, 1, v{vO3}
    v_mad_u32_u24 v{vO3}, v{vO1}, 12, v{vO3}
    s_mul_i32 s43, s2, {8*1792}
    s_add_u32 s43, s43, s29
    v_add_f32 v{vCK}, |v{O}|, |v{O+1}|""".split("\n")
    side += [f"v_add_f32 v{vCK}, v{vCK}, |v{O+j}|" for j in range(2, 16)]
    side += f"""s_mov_b32 s44, {f2u(2.0**-90)}
    s_mov_b32 s45, {f2u(2.0**100)}
    s_mov_b32 s46, {f2u(2.0**-100)}
    v_cmp_nle_f32 s[56:57], s44, v{vL}
    v_cmp_nge_f32 s[58:59], s45, v{vL}
    v_cmp_nle_f32 s[60:61], s46, v{vCK}
    s_mov_b32 s44, 0x7f800000
    v_cmp_ngt_f32 vcc, s44, v{vCK}
    s_lshl_b32 s45, s3, 2
    v_mov_b32 v{vL}, s45
    s_or_b64 s[56:57], s[56:57], s[58:59]
    s_or_b64 s[60:61], s[60:61], vcc
    s_or_b64 s[56:57], s[56:57], s[60:61]
    s_cselect_b32 s44, 1, {1 if OPT['force_fb'] else 0}
    v_mov_b32 v{vCK}, s44
    ds_write_b32 v{vL}, v{vCK} offset:{FLG}""".split("\n")
    R = ACC + 32
    post = {}
    for pos in range(7):
        d = D + 4 * pos
        p = [f"v_add_f32 v{d}, v{d}, v{d+1}", f"v_add_f32 v{d+2}, v{d+2}, v{d+3}"]
        if pos == 0:
            p += [f"v_cvt_pk_bf16_f32 v{d}, v{d}, v{d+2}",
                  f"buffer_store_short v{d}, v{AD+9}, s[{SOUT}:{SOUT+3}], s43 offen offset:192",
                  f"buffer_store_short_d16_hi v{d}, v{AD+9}, s[{SOUT}:{SOUT+3}], s43 offen offset:{192+1792}"]
        elif pos % 2 == 0:
            j = pos // 2 - 1
            p += [f"v_cvt_pk_bf16_f32 v{R+j}, v{d-4}, v{d}", f"v_cvt_pk_bf16_f32 v{R+4+j}, v{d-2}, v{d+2}"]
        post[pos] = p
    pend = []
    for pos in range(7):
        for u in range(7):
            k, r, s = womap[7 * pos + u]
            A(f"v_smfmac_f32_16x16x64_bf16 {vr(D+4*pos,4)}, {vr(AF[u],4)}, {k}[{r}:{r+7}], v{vIX}")
            if u == 4 and pos > 0: pend += post[pos - 1]
            if pend: A(pend.pop(0))
            elif side: A(side.pop(0))
            while side and side[0].strip().startswith("s_"): A(side.pop(0))
    for x in pend + side + post[6]: A(x)
    A(f"buffer_store_dwordx3 {vr(R,3)}, v{vO3}, s[{SOUT}:{SOUT+3}], s43 offen")
    A(f"buffer_store_dwordx3 {vr(R+4,3)}, v{vO3}, s[{SOUT}:{SOUT+3}], s43 offen offset:1792")
    stamp(A, 6)
    A(f"""v_mov_b32 v4, 0
    s_waitcnt lgkmcnt(0)
    s_barrier
    ds_read_b128 v[8:11], v4 offset:{FLG}
    v_or_b32 v8, v8, v9
    v_or3_b32 v8, v8, v10, v11
    v_readfirstlane_b32 s44, v8
    s_cmp_gt_u32 s44, s47
    s_cbranch_scc1 main_fallback""")
    F = A.fork()
    stamp_out(A, 7, 0x10000, SWS)
    A.label("main_exit")
    A("s_endpgm")

    F.label("main_fallback")
    F("s_waitcnt vmcnt(0)\ns_mov_b32 s47, 1")
    for jj in range(4): F(f"v_mov_b64 {vr(QR+8*jj+6,2)}, 0\nv_mov_b32 v{4+jj}, 0xff800000")
    F(f"s_lshl_b32 s30, s3, 16\ns_add_u32 s30, s30, {KVF}\ns_mov_b32 exec_hi, 0")
    q_loads(F, [(jj, 3) for jj in range(4)])
    F("s_mov_b32 exec_hi, -1")
    q_loads(F, [(jj, i) for jj in range(4) for i in range(3)])
    F("s_mov_b32 s44, 0\ns_waitcnt vmcnt(0)")
    F.label("fb_loop")
    F(kvload(0, 0)); F(kvload(0, 1))
    for jj in range(4):
        F(qk(12 * jj + jj - 12 * jj, 0).replace(vr(SB + 16 * (jj % 3), 16), vr(SB, 16)))
        F(qk(jj, 1).replace(vr(SB + 16 * (jj % 3), 16), vr(SB, 16)))
        for j in range(8): F(f"v_max3_f32 v{4+jj}, v{4+jj}, v{SB+2*j}, v{SB+2*j+1}")
    F("s_add_u32 s44, s44, 1\ns_cmp_lt_u32 s44, 16\ns_nop 1\ns_cbranch_scc1 fb_loop")
    F(f"v_lshlrev_b32 v8, 2, v0\ns_lshl_b32 s44, s3, 8")
    for jj in range(4):
        F(f"""v_mov_b32 v9, v{4+jj}
        v_permlane32_swap_b32 v9, v{4+jj}
        v_max_f32 v9, v9, v{4+jj}
        s_lshl_b32 s45, s{36+jj}, 10
        v_add_u32 v{12+jj}, s45, v8
        v_add_u32 v10, s44, v{12+jj}
        ds_write_b32 v10, v9 offset:{MX}""")
    F("s_waitcnt lgkmcnt(0)\ns_barrier\ns_mov_b32 s44, 0x07060302")
    for jj in range(4):
        for k in range(4): F(f"ds_read_b32 v{16+k}, v{12+jj} offset:{MX+256*k}")
        F(f"""v_max3_f32 v16, v16, v17, v18
        v_max_f32 v16, v16, v19
        v_xor_b32 v16, 0x80000000, v16
        v_and_b32 v17, 0xffff0000, v16
        v_sub_f32 v18, v16, v17
        v_and_b32 v19, 0xffff0000, v18
        v_sub_f32 v18, v18, v19
        v_perm_b32 v{QR+8*jj+6}, v19, v17, s44
        v_lshrrev_b32 v{QR+8*jj+7}, 16, v18""")
    F("s_nop 4\ns_branch main_restart")
    return [A, F]


def kdesc(name, vg, acc):
    return f""".p2align 6
.amdhsa_kernel {name}
  .amdhsa_next_free_vgpr {vg}
  .amdhsa_next_free_sgpr 102
  .amdhsa_accum_offset {acc}
  .amdhsa_group_segment_fixed_size 0
  .amdhsa_kernarg_size 104
  .amdhsa_user_sgpr_count 2
  .amdhsa_user_sgpr_kernarg_segment_ptr 1
  .amdhsa_system_sgpr_workgroup_id_x 1
.end_amdhsa_kernel
"""


def build(verbose=False):
    hdr = open(f"cdna_kernels/{NAME}.s.ref").read().split("; Override launch")[0]
    s = hdr
    s += "; @launch kernel=pre_kernel grid=(256,1,1) block=(256,1,1) lds=155648\n"
    s += f"; @launch kernel={NAME}_kernel grid=(256,1,1) block=(256,1,1) lds={LDS2}\n"
    s += '.amdgcn_target "amdgcn-amd-amdhsa--gfx950"\n.text\n'
    for name, parts in (("pre_kernel", gen_pre()), (NAME + "_kernel", gen_main())):
        s += f".globl {name}\n.p2align 8\n.type {name},@function\n{name}:\n"
        for p in parts:
            s += p.text()
            if verbose:
                print(name, "lines", len(p.out), "nop states", p.nops, file=sys.stderr)
                for l in p.log: print("    ", l, file=sys.stderr)
    s += '.section .rodata,"a"\n' + kdesc("pre_kernel", 256, 256) + kdesc(NAME + "_kernel", 512, 256)
    return s


if __name__ == "__main__":
    out = sys.argv[1]
    for a in sys.argv[2:]:
        k, v = a.split("=")
        OPT[k] = eval(v)
    open(out, "w").write(build(OPT.get("verbose", False)))
```

```python
import sys, gen
def mk(src, name, off):
    s = open(src).read()
    L = [l for l in s.split("\n") if l.startswith("; @launch")]
    s = s.replace(L[-1], L[-1] + "\n; @launch kernel=diag_kernel grid=(1,1,1) block=(64,1,1) lds=0")
    body = f""".globl diag_kernel
.p2align 8
.type diag_kernel,@function
diag_kernel:
  s_load_dwordx2 s[4:5], s[0:1], 96
  s_waitcnt lgkmcnt(0)
  s_mov_b32 s6, 0x10000000
  s_mov_b32 s7, 0x20000
  v_mov_b32 v1, {off}
  buffer_load_dword v2, v1, s[4:7], 0 offen
  s_waitcnt vmcnt(0)
  v_readfirstlane_b32 s8, v2
  s_mov_b32 s9, 0
diag_loop:
  s_memrealtime s[10:11]
  s_waitcnt lgkmcnt(0)
  s_sub_u32 s10, s10, s8
  s_add_u32 s9, s9, 1
  s_cmp_gt_u32 s9, 20000
  s_cbranch_scc1 diag_end
  s_cmp_lt_u32 s10, 6000
  s_cbranch_scc1 diag_loop
diag_end:
  s_endpgm
"""
    s = s.replace('.section .rodata,"a"\n', body + '.section .rodata,"a"\n') + gen.kdesc("diag_kernel", 8, 8)
    open(name, "w").write(s)
if __name__ == "__main__":
    src = sys.argv[1]
    D = gen.DBG
    mk(src, "d_a.s", D + 56); mk(src, "d_b.s", D + 4 * 64 + 60); mk(src, "d_c.s", D + 0x10000 + 56); mk(src, "d_d.s", D + 0x10000 + 60)
```

```python
import sys, re, gen
def mk(src, name, diag):
    s = open(src).read()
    N = gen.NAME + "_kernel"
    L = [l for l in s.split("\n") if l.startswith("; @launch")]
    s = s.replace(L[0] + "\n" + L[1], "; @launch grid=(256,1,1) block=(256,1,1) lds=155648")
    i0 = s.index(".globl pre_kernel"); i1 = s.index(f".globl {N}"); i2 = s.index('.section .rodata')
    pre, main = s[i0:i1], s[i1:i2]
    pre = pre.replace("pre_exit:\n  s_endpgm", "pre_exit:\n  s_EXIT").replace("s_endpgm", "s_branch gsync").replace("s_EXIT", "s_endpgm").replace("pre_kernel", N)
    if diag: pre = pre.replace(N + ":\n", N + ":\n  s_memrealtime s[94:95]\n")
    main = main[main.index(N + ":\n") + len(N) + 2:]
    sync = """gsync:
  s_load_dwordx2 s[4:5], s[0:1], 88
  s_waitcnt vmcnt(0) lgkmcnt(0)
  s_barrier
  s_cmp_lg_u32 s3, 0
  s_cbranch_scc1 gsync_w
  s_mov_b32 s6, 256
  s_mov_b32 s7, 0x20000
  buffer_wbl2 sc1
  s_waitcnt vmcnt(0)
  v_mov_b32 v1, 1
  v_mov_b32 v2, 0
  s_mov_b64 exec, 1
  buffer_atomic_add v1, v2, s[4:7], 0 offen
  s_mov_b32 s9, 0
gsync_l:
  buffer_load_dword v3, v2, s[4:7], 0 offen sc1
  s_add_u32 s9, s9, 1
  s_waitcnt vmcnt(0)
  v_readfirstlane_b32 s8, v3
  s_cmp_gt_u32 s9, 100000
  s_cbranch_scc1 gsync_x
  s_cmp_lt_u32 s8, 256
  s_cbranch_scc1 gsync_l
gsync_x:
  s_mov_b64 exec, -1
  buffer_inv sc1
  s_waitcnt vmcnt(0)
gsync_w:
  s_barrier
  s_lshl_b32 s3, s3, 6
  v_add_u32 v0, s3, v0
"""
    if diag:
        main = main.replace("main_exit:\n  s_endpgm", """  s_cmp_lg_u32 s2, 0
  s_cbranch_scc1 main_exit
  s_mov_b32 s9, 0
diag_loop:
  s_memrealtime s[10:11]
  s_waitcnt lgkmcnt(0)
  s_sub_u32 s10, s10, s94
  s_add_u32 s9, s9, 1
  s_cmp_gt_u32 s9, 20000
  s_cbranch_scc1 main_exit
  s_cmp_lt_u32 s10, 6000
  s_cbranch_scc1 diag_loop
main_exit:
  s_endpgm""")
    s = s[:i0] + pre + sync + main + '.section .rodata,"a"\n' + gen.kdesc(N, 512, 256)
    open(name, "w").write(s)
mk("k1.s", "s_a.s", False); mk("k1.s", "s_b.s", True)
```
